```python
import torch

def _softmax(x, axis=-1):
    return torch.softmax(x, dim=axis)
def _gelu(x):
    return torch.nn.functional.gelu(x, approximate="tanh")
def _silu(x):
    return torch.nn.functional.silu(x)
def _sigmoid(x):
    return torch.sigmoid(x)
def _layernorm(x, axis=-1, eps=1e-5):
    m = x.mean(dim=axis, keepdim=True)
    v = x.var(dim=axis, keepdim=True, unbiased=False)
    return (x - m) / torch.sqrt(v + eps)
def _scatter_add(tgt, idx, src, axis=0):
    return tgt.clone().index_add_(axis, idx, src)
def _segment_sum(src, seg, n):
    out = torch.zeros((n,) + src.shape[1:], dtype=src.dtype)
    return out.index_add_(0, seg, src)
def _pad(x, pw):
    flat = tuple(v for pair in reversed(pw) for v in pair)
    return torch.nn.functional.pad(x, flat)

kernel_name = 'standalone__gqa_block_cached__near_ridge'

def setup_inputs():

    _w = (lambda a: (lambda t: t.to(torch.bfloat16) if t.is_floating_point() else t)(torch.as_tensor(a)))
    B, Sq, D = 8, 192, 640
    Hq, Hkv, Sk, Dh = 32, 32, 512, 192
    assert Hq % Hkv == 0, (Hq, Hkv)
    return {
        "x": _w((lambda *s: torch.randn(*s, dtype=torch.bfloat16) * 0.8)(B, Sq, D)),
        "k_cache": _w((lambda *s: torch.randn(*s, dtype=torch.bfloat16) * 0.8)(B, Hkv, Sk, Dh)),
        "v_cache": _w((lambda *s: torch.randn(*s, dtype=torch.bfloat16) * 0.05)(B, Hkv, Sk, Dh)),
        "wq": _w((lambda *s: torch.randn(*s, dtype=torch.bfloat16) * 0.8)(D, Hq * Dh) * (D ** -0.5)),
        "wo": _w((lambda *s: torch.randn(*s, dtype=torch.bfloat16) * 0.05)(Hq * Dh, D) * ((Hq * Dh) ** -0.5)),
    }

def reference(x, k_cache, v_cache, wq, wo):
    B, Sq, D = x.shape
    Hq, Dh = 32, 192
    Hkv = k_cache.shape[1]
    rep = Hq // Hkv
    q = (lambda x, *d: x.permute(*d))((x @ wq).reshape(B, Sq, Hq, Dh), 0, 2, 1, 3)
    k = (lambda x, n, axis: torch.repeat_interleave(x, n, dim=axis))(k_cache, rep, axis=1)
    v = (lambda x, n, axis: torch.repeat_interleave(x, n, dim=axis))(v_cache, rep, axis=1)
    scores = torch.einsum("bhqd,bhkd->bhqk", q, k) * (Dh ** -0.5)
    p = _softmax(scores, axis=-1)
    o = torch.einsum("bhqk,bhkd->bhqd", p, v)
    return (lambda x, *d: x.permute(*d))(o, 0, 2, 1, 3).reshape(B, Sq, Hq * Dh) @ wo
```

```python
import re

def regs_of(tok):
    tok = tok.strip()
    tok = tok.lstrip('-')
    m = re.fullmatch(r'abs\((.*)\)', tok)
    if m: tok = m.group(1)
    if tok.startswith('|') and tok.endswith('|'): tok = tok[1:-1]
    m = re.fullmatch(r'([vas])\[(\d+):(\d+)\]', tok)
    if m:
        return [f"{m.group(1)}{i}" for i in range(int(m.group(2)), int(m.group(3)) + 1)]
    if re.fullmatch(r'[vas]\d+', tok): return [tok]
    if tok in ('vcc', 'exec', 'm0', 'scc'): return [tok]
    if tok in ('vcc_lo', 'vcc_hi'): return ['vcc']
    if tok in ('exec_lo', 'exec_hi'): return ['exec']
    return []

TRANS = ('v_exp_f32', 'v_log_f32', 'v_rcp_f32', 'v_rsq_f32', 'v_sqrt_f32')

class I:
    __slots__ = ('text', 'op', 'kind', 'rd', 'wr', 'tag', 'srcc', 'waits', 'note')
    def __init__(self, text, tag=None):
        self.text = text
        self.tag = tag
        self.srcc = []
        self.waits = None
        t = text.split(';')[0].strip()
        if t.endswith(':') or t.startswith('.') or t == '':
            self.op = ''; self.kind = 'label'; self.rd = set(); self.wr = set(); return
        parts = t.split(None, 1)
        op = parts[0]; self.op = op
        ops = []
        if len(parts) > 1:
            cur = ''; depth = 0
            for ch in parts[1]:
                if ch in '[(': depth += 1
                if ch in '])': depth -= 1
                if ch == ',' and depth == 0:
                    ops.append(cur.strip()); cur = ''
                else:
                    cur += ch
            ops.append(cur.strip())
        mods = []
        if ops:
            sp = ops[-1].split()
            ops[-1] = sp[0] if sp else ''
            mods = sp[1:]
        R = lambda i: regs_of(ops[i]) if i < len(ops) else []
        rd = []; wr = []
        if op.startswith('v_mfma'):
            self.kind = 'mfma'; wr = R(0); rd = R(1) + R(2) + R(3); self.srcc = R(3)
        elif op.startswith('v_permlane'):
            self.kind = 'perm'; wr = R(0) + R(1); rd = R(0) + R(1)
        elif op.startswith('v_cmp'):
            self.kind = 'valu'; wr = R(0); rd = R(1) + R(2)
        elif op.startswith('v_readfirstlane') or op.startswith('v_readlane'):
            self.kind = 'rdlane'; wr = R(0); rd = R(1) + R(2)
        elif op.startswith('v_'):
            self.kind = 'trans' if op in TRANS else 'valu'
            if op == 'v_nop':
                pass
            else:
                wr = R(0)
                k = 1
                if op.startswith('v_add_co') or op.startswith('v_addc_co') or op.startswith('v_sub_co'):
                    wr += R(1); k = 2
                for i in range(k, len(ops)): rd += R(i)
                if op.startswith('v_fmac') or op.startswith('v_dot2c'): rd += R(0)
        elif op.startswith('ds_read'):
            self.kind = 'dsr'; wr = R(0); rd = R(1)
        elif op.startswith('ds_write'):
            self.kind = 'dsw'; rd = R(0) + R(1) + R(2)
        elif op.startswith('buffer_load'):
            if 'lds' in mods:
                self.kind = 'dma'; rd = R(0) + R(1) + R(2) + ['m0']
            else:
                self.kind = 'vld'; wr = R(0); rd = R(1) + R(2) + R(3)
        elif op.startswith('buffer_store'):
            self.kind = 'vst'; rd = R(0) + R(1) + R(2) + R(3)
        elif op.startswith('buffer_atomic'):
            self.kind = 'vst'; rd = R(0) + R(1) + R(2) + R(3)
            if 'sc0' in mods: self.kind = 'vld'; wr = R(0)
        elif op.startswith('buffer_wbl2') or op.startswith('buffer_inv'):
            self.kind = 'vst'
        elif op.startswith('global_load'):
            self.kind = 'vld'; wr = R(0); rd = R(1) + R(2)
        elif op.startswith('global_store'):
            self.kind = 'vst'; rd = R(0) + R(1) + R(2)
        elif op.startswith('global_atomic'):
            if 'sc0' in mods:
                self.kind = 'vld'; wr = R(0); rd = R(1) + R(2) + R(3)
            else:
                self.kind = 'vst'; rd = R(0) + R(1) + R(2)
        elif op == 's_waitcnt':
            self.kind = 'wait'
        elif op == 's_barrier':
            self.kind = 'barrier'
        elif op == 's_nop':
            self.kind = 'nop'
        elif op.startswith('s_cbranch') or op == 's_branch' or op == 's_endpgm' or op.startswith('s_setpc'):
            self.kind = 'branch'
            if 'scc' in op: rd = ['scc']
            if 'vcc' in op: rd = ['vcc']
            if 'exec' in op: rd = ['exec']
        elif op.startswith('s_load') or op in ('s_memtime', 's_memrealtime'):
            self.kind = 'smem'; wr = R(0); rd = R(1)
        elif op.startswith('s_cmp') or op.startswith('s_bitcmp'):
            self.kind = 'salu'; wr = ['scc']; rd = R(0) + R(1)
        elif op in ('s_setprio', 's_sleep'):
            self.kind = 'salu'
        elif op.startswith('s_'):
            self.kind = 'salu'; wr = R(0)
            for i in range(1, len(ops)): rd += R(i)
            if op.startswith('s_cselect') or op.startswith('s_addc') or op.startswith('s_cmov'): rd.append('scc')
            if 'saveexec' in op: wr.append('exec'); rd.append('exec')
            if op.startswith('s_addk') or op.startswith('s_mulk'): rd += R(0)
            if not (op.startswith('s_mov') or op.startswith('s_mul') or op.startswith('s_cselect') or op.startswith('s_getpc') or op.startswith('s_getreg')):
                wr.append('scc')
        else:
            raise ValueError("unknown instruction: " + text)
        self.rd = set(rd); self.wr = set(wr)

VALU_KINDS = ('valu', 'trans', 'perm', 'rdlane')
VMEM_KINDS = ('dma', 'vld', 'vst')

def mfma_passes(op):
    if '16x16x32' in op: return 4
    if '32x32x16' in op: return 8
    raise ValueError(op)

class Stream:
    def __init__(self):
        self.out = []
        self.lg = []
        self.smem = False
        self.smem_regs = set()
        self.vm = []
        self.hist = []
        self.nops = 0
        self.cnt = {}
        self.nwait = 0

    def clone_state_from(self, o):
        self.lg = list(o.lg); self.vm = list(o.vm); self.smem = o.smem; self.smem_regs = set(o.smem_regs); self.hist = list(o.hist); self.cnt = dict(o.cnt)

    def _push(self, ins):
        self.out.append(ins)
        if ins.kind == 'label': return
        st = 1
        if ins.kind == 'nop': st = int(ins.text.split()[1]) + 1
        self.hist.append((ins, st))
        if len(self.hist) > 40: self.hist.pop(0)

    def wait(self, vm=None, lg=None):
        parts = []
        if vm is not None:
            vm = min(vm, 63)
            if len(self.vm) > vm:
                self.vm = self.vm[len(self.vm) - vm:] if vm > 0 else []
            parts.append(f"vmcnt({vm})")
        if lg is not None:
            lg = min(lg, 15)
            if lg == 0:
                self.smem = False; self.smem_regs = set()
            if len(self.lg) > lg:
                self.lg = self.lg[len(self.lg) - lg:] if lg > 0 else []
            parts.append(f"lgkmcnt({lg})")
        self._push(I("s_waitcnt " + " ".join(parts)))
        self.nwait += 1

    def vm_count_for_tags(self, tags):
        last = -1
        for i, (tg, _, _) in enumerate(self.vm):
            if tg in tags: last = i
        if last < 0: return None
        return len(self.vm) - 1 - last

    def wait_tags(self, tags, lg=None, expect=None):
        if expect:
            for tg in tags:
                e = expect(tg)
                assert self.cnt.get(tg, 0) == e, (tg, self.cnt.get(tg, 0), e)
        n = self.vm_count_for_tags(tags)
        if lg is not None and lg == 0 and not self.lg and not self.smem: lg = None
        if n is None and lg is None: return
        self.wait(vm=n, lg=lg)

    def emit(self, text, tag=None):
        if isinstance(text, (list, tuple)):
            for t in text: self.emit(t)
            return
        if isinstance(text, I): ins = text
        elif callable(text):
            text(self); return
        else: ins = I(text, tag)
        touched = ins.rd | ins.wr
        need_lg = None
        if self.smem and (touched & self.smem_regs): need_lg = 0
        for i, d in enumerate(self.lg):
            if d & touched:
                n = len(self.lg) - 1 - i
                if self.smem: n = 0
                need_lg = n if need_lg is None else min(need_lg, n)
        need_vm = None
        for i, (tg, d, data) in enumerate(self.vm):
            if d & touched:
                n = len(self.vm) - 1 - i
                need_vm = n if need_vm is None else min(need_vm, n)
        if need_lg is not None or need_vm is not None:
            self.wait(vm=need_vm, lg=need_lg)
        need = 0
        dist = 0
        for prev, st in reversed(self.hist):
            req = self._hazard(prev, ins)
            if req > dist: need = max(need, req - dist)
            dist += st
            if dist > 24: break
        while need > 0:
            k = min(need, 16)
            self._push(I(f"s_nop {k-1}"))
            self.nops += k
            need -= k
        self._push(ins)
        if ins.kind in ('dsr', 'dsw'):
            self.lg.append(set(ins.wr))
            assert len(self.lg) <= 64
        elif ins.kind == 'smem':
            self.smem = True; self.smem_regs |= ins.wr
        elif ins.kind in VMEM_KINDS:
            self.vm.append((ins.tag, set(ins.wr), set()))
            self.cnt[ins.tag] = self.cnt.get(ins.tag, 0) + 1

    @staticmethod
    def _hazard(p, c):
        req = 0
        pv = {r for r in p.wr if r[0] in 'va' and r != 'vcc'}
        ps = {r for r in p.wr if r[0] == 's' and r != 'scc' or r == 'vcc'}
        if p.kind == 'mfma':
            n = mfma_passes(p.op)
            long = {4: 8, 8: 12}[n]
            if c.kind == 'mfma':
                ab = c.rd - set(c.srcc) if False else None
                t = c.text.split(None, 1)[1]
                o = [x.strip() for x in re.split(r',\s*(?![^\[]*\])', t)]
                abregs = set(regs_of(o[1])) | set(regs_of(o[2]))
                if pv & abregs: req = max(req, long)
                cc = set(c.srcc)
                if pv & cc:
                    if not (pv == cc and p.op == c.op): req = max(req, {4: 6, 8: 10}[n])
                elif pv & c.wr:
                    req = max(req, long)
            elif c.kind in VALU_KINDS or c.kind in VMEM_KINDS or c.kind in ('dsr', 'dsw'):
                if pv & (c.rd | c.wr): req = max(req, long)
                if c.kind in VALU_KINDS and set(p.srcc) & c.wr: req = max(req, {4: 3, 8: 7}[n])
        if p.kind in VALU_KINDS:
            if c.kind == 'mfma' and pv & c.rd: req = max(req, 2)
            if c.kind == 'perm' and pv & c.rd: req = max(req, 2)
            if c.kind == 'rdlane' and pv & c.rd: req = max(req, 1)
            if p.kind == 'trans' and c.kind in ('valu', 'perm', 'rdlane') and pv & c.rd: req = max(req, 1)
            if ps:
                if c.kind in VMEM_KINDS and ps & c.rd: req = max(req, 5)
                if c.kind in VALU_KINDS and ps & c.rd: req = max(req, 2 if c.kind != 'rdlane' else 4)
                if c.kind in ('salu', 'branch') and ps & c.rd: req = max(req, 1)
            if 'exec' in p.wr: req = max(req, 4)
        if p.kind == 'salu' and 'm0' in p.wr and c.kind == 'dma': req = max(req, 1)
        if p.kind in ('vst',) and c.kind in VALU_KINDS + ('dsr', 'vld'):
            if ('x4' in p.op or 'x3' in p.op) and {r for r in p.rd if r[0] in 'va'} & c.wr: req = max(req, 2)
        if p.kind == 'dsw' and c.kind in VALU_KINDS:
            if {r for r in p.rd if r[0] in 'va'} & c.wr and ('b128' in p.op): req = max(req, 2)
        return req

    def text(self):
        lines = []
        for i in self.out:
            lines.append(i.text if i.kind == 'label' else "    " + i.text)
        return "\n".join(lines) + "\n"


def interleave(s, mfmas, fillers):
    for it in fillers.get(-1, []): s.emit(it)
    for i, m in enumerate(mfmas):
        s.emit(m)
        for it in fillers.get(i, []): s.emit(it)


class Gaps:
    def __init__(self, n):
        self.n = n
        self.sc = [[] for _ in range(n)]
        self.ds = [[] for _ in range(n)]
        self.va = [[] for _ in range(n)]
        self.used = [0] * n
        self.pre = []
    def put(self, g, item, kind, cost):
        g = min(g, self.n - 1)
        {'s': self.sc, 'd': self.ds, 'v': self.va}[kind][g].append(item)
        self.used[g] += cost
    def place(self, start, item, kind, cost, cap=2, maxds=1):
        g = start
        while g < self.n:
            if self.used[g] + cost <= cap and not (kind == 'd' and len(self.ds[g]) >= maxds): break
            if cost > cap and self.used[g] == 0: break
            g += 1
        if g >= self.n: g = self.n - 1
        self.put(g, item, kind, cost)
        return g
    def fillers(self):
        f = {-1: self.pre}
        for g in range(self.n):
            f[g] = self.sc[g] + self.ds[g] + self.va[g]
        return f
```

```python
import sys, math, struct
sys.path.insert(0, "tools")
from dsl import Stream, Gaps, I, interleave

CFG = dict(
    kv_pol="nt",
    w_pol="",
    o_st="",
    o_ld="",
    p_st="",
    p_ld="",
    rot_b=0, rot_h=0,
    kv_start=0, kv_rate=4,
    stamps=0,
)

MF = "v_mfma_f32_16x16x32_bf16"
OOFF = 0
POFF = 32 << 20
SOFF = 64 << 20
U = 12288

def f2u(x): return struct.unpack("<I", struct.pack("<f", x))[0]
def vr(a, n): return f"v[{a}:{a+n-1}]" if n > 1 else f"v{a}"
def ar(a, n): return f"a[{a}:{a+n-1}]" if n > 1 else f"a{a}"
def sr(a, n): return f"s[{a}:{a+n-1}]" if n > 1 else f"s{a}"

def desc(name, vgpr=512, acc=256, sgpr=102):
    return f""".p2align 6
.amdhsa_kernel {name}
  .amdhsa_next_free_vgpr {vgpr}
  .amdhsa_next_free_sgpr {sgpr}
  .amdhsa_accum_offset {acc}
  .amdhsa_group_segment_fixed_size 0
  .amdhsa_kernarg_size 64
  .amdhsa_user_sgpr_count 2
  .amdhsa_user_sgpr_kernarg_segment_ptr 1
  .amdhsa_system_sgpr_workgroup_id_x 1
  .amdhsa_float_denorm_mode_32 3
.end_amdhsa_kernel
"""

def head(name):
    return f".p2align 8\n.globl {name}\n.type {name},@function\n{name}:\n"

def srd(s, d, ptr, off_s, size):
    if off_s is None:
        s.emit(f"s_mov_b32 s{d}, s{ptr}")
        s.emit(f"s_mov_b32 s{d+1}, s{ptr+1}")
    else:
        s.emit(f"s_add_u32 s{d}, s{ptr}, {off_s}")
        s.emit(f"s_addc_u32 s{d+1}, s{ptr+1}, 0")
    s.emit(f"s_mov_b32 s{d+2}, {size}")
    s.emit(f"s_mov_b32 s{d+3}, 0x20000")

def code_touch(s, nbytes, vtmp, vdst, stmp, share):
    lines = (nbytes + 127) // 128
    s.emit(f"s_getpc_b64 {sr(stmp,2)}")
    s.emit(f"v_lshlrev_b32 v{vtmp}, 7, v0")
    k = (lines + 255) // 256
    for j in range(k):
        n = min(256, lines - j * 256)
        s.emit(f"v_min_u32 v{vdst+j}, {(n-1)*128}, v{vtmp}")
        if j: s.emit(f"v_add_u32 v{vdst+j}, {j*32768}, v{vdst+j}")
        s.emit(f"global_load_dword v{vdst+j}, v{vdst+j}, {sr(stmp,2)}", tag="touch")

def stamp(s, cfg, idx):
    if not cfg["stamps"]: return
    s.emit(f"s_memrealtime {sr(80+2*idx,2)}")

def stamp_flush(s, cfg, n, kidx, ws_ptr, wave_s):
    if not cfg["stamps"]: return
    s.wait(vm=0, lg=0)
    s.emit(f"s_memrealtime {sr(80+2*n,2)}")
    s.wait(lg=0)
    s.emit(f"s_lshl_b32 s60, s2, 2")
    s.emit(f"s_add_u32 s60, s60, s{wave_s}")
    s.emit(f"s_lshl_b32 s60, s60, 6")
    s.emit(f"s_add_u32 s60, s60, {SOFF + kidx*(1<<20)}")
    s.emit(f"v_mov_b32 v2, s60")
    for i in range(n + 1):
        s.emit(f"v_mov_b32 v3, s{80+2*i}")
        s.emit(f"global_store_dword v2, v3, {sr(ws_ptr,2)} offset:{4*i}")
    s.wait(vm=0)

S_X, S_WQ, S_K, S_V, S_O = 4, 8, 12, 16, 20
S_WAVE, S_B, S_H = 24, 25, 26
S_WQOFF, S_XOFF, S_T0, S_T1 = 27, 28, 29, 30
S_M0X, S_M0W, S_KV, S_PASS = 31, 32, 33, 34
S_SC = 36
S_PTR = 40
S_SO = 56
S_SO2 = 57

V_ACC = 112
V_S = [64, 88]
V_P = 52
V_NM = 40
V_L = 37
V_KA = 8
V_VA = 12
V_DK = 20
V_DV = 23
V_MP = 26
V_T = 29
V_DWQ, V_DX, V_W, V_X, V_DKE = 64, 68, 72, 76, 78
A_Q, A_KF, A_VF = 0, 72, 120
A_AF, A_XF = 72, 120

L_P1 = 3 * U
L_W = 7 * U
L_MISC = 13 * U
def kslot(t): return (t % 6) * U
def vslot(t):
    j = t % 6
    return (10 + j) * U if j < 3 else (7 + j - 3) * U

def acc(T, qt): return V_ACC + (T * 3 + qt) * 4

def k1_setup(s, cfg):
    s.emit(f"s_load_dwordx16 {sr(S_PTR,16)}, s[0:1], 0")
    s.emit("s_cmp_ge_u32 s2, 256")
    s.emit("s_cbranch_scc1 K1_END")
    stamp(s, cfg, 0)
    s.emit("v_and_b32 v1, 63, v0")
    s.emit("v_lshrrev_b32 v2, 6, v0")
    s.emit(f"v_readfirstlane_b32 s{S_WAVE}, v2")
    s.emit(f"s_and_b32 s{S_T0}, s2, 7")
    s.emit(f"s_lshl_b32 s{S_T0}, s{S_T0}, 2")
    s.emit(f"s_lshr_b32 s{S_T1}, s2, 3")
    s.emit(f"s_and_b32 s{S_T1}, s{S_T1}, 3")
    s.emit(f"s_add_u32 s{S_H}, s{S_T0}, s{S_T1}")
    s.emit(f"s_lshr_b32 s{S_B}, s2, 5")
    s.emit(f"s_mul_i32 s{S_T0}, s{S_B}, {cfg['rot_b']}")
    s.emit(f"s_mul_i32 s{S_T1}, s{S_T1}, {cfg['rot_h']}")
    s.emit(f"s_add_u32 s{S_T0}, s{S_T0}, s{S_T1}")
    s.emit(f"s_mul_i32 s{S_T1}, s{S_T0}, 6554")
    s.emit(f"s_lshr_b32 s{S_T1}, s{S_T1}, 16")
    s.emit(f"s_mul_i32 s{S_T1}, s{S_T1}, 10")
    s.emit(f"s_sub_u32 s{S_T0}, s{S_T0}, s{S_T1}")
    s.emit(f"s_lshl_b32 s{S_XOFF}, s{S_T0}, 7")
    s.emit(f"s_mul_i32 s{S_WQOFF}, s{S_T0}, {2*32*12288}")
    s.emit("v_lshrrev_b32 v2, 4, v1")
    s.emit("v_and_b32 v3, 15, v1")
    s.emit("v_lshrrev_b32 v4, 2, v3")
    s.emit("v_and_b32 v5, 3, v3")
    s.emit(f"s_lshl_b32 s{S_T0}, s{S_WAVE}, 8")
    s.emit(f"s_mov_b32 s{S_T1}, 2731")
    t0, t1, t2 = V_T, V_T + 1, V_T + 2
    for j in range(4):
        s.emit(f"v_add_u32 v{t0}, s{S_T0}, v1")
        if j: s.emit(f"v_add_u32 v{t0}, {64*j}, v{t0}")
        s.emit(f"v_mul_lo_u32 v{t1}, v{t0}, s{S_T1}")
        s.emit(f"v_lshrrev_b32 v{t1}, 16, v{t1}")
        s.emit(f"v_mul_u32_u24 v{t2}, 24, v{t1}")
        s.emit(f"v_sub_u32 v{t0}, v{t0}, v{t2}")
        s.emit(f"v_bfe_u32 v{t2}, v{t1}, 3, 1")
        s.emit(f"v_lshlrev_b32 v{t2}, 2, v{t2}")
        s.emit(f"v_xor_b32 v{t0}, v{t0}, v{t2}")
        s.emit(f"v_and_b32 v{t2}, 2, v{t1}")
        s.emit(f"v_xor_b32 v{t0}, v{t0}, v{t2}")
        s.emit(f"v_lshlrev_b32 v{t0}, 4, v{t0}")
        s.emit(f"v_mul_u32_u24 v{t1}, 0x3000, v{t1}")
        s.emit(f"v_add_u32 v{V_DWQ+j}, v{t0}, v{t1}")
        if j: s.emit(f"v_subrev_u32 v{V_DWQ+j}, {1024*j}, v{V_DWQ+j}")
    s.emit(f"s_mul_i32 s{S_T0}, s{S_WAVE}, {64*1280}")
    s.emit(f"v_lshrrev_b32 v{t0}, 3, v1")
    s.emit(f"v_lshrrev_b32 v{t1}, 1, v{t0}")
    s.emit(f"v_and_b32 v{t2}, 7, v1")
    s.emit(f"v_xor_b32 v{t1}, v{t1}, v{t2}")
    s.emit(f"v_lshlrev_b32 v{t1}, 4, v{t1}")
    s.emit(f"v_mul_u32_u24 v{t0}, 0x500, v{t0}")
    s.emit(f"v_add_u32 v{t0}, s{S_T0}, v{t0}")
    for j in range(4):
        if j & 1:
            s.emit(f"v_xor_b32 v{t2}, 64, v{t1}")
            s.emit(f"v_add_u32 v{V_DX+j}, v{t0}, v{t2}")
        else:
            s.emit(f"v_add_u32 v{V_DX+j}, v{t0}, v{t1}")
        if j: s.emit(f"v_add_u32 v{V_DX+j}, {j*(8*1280-1024)}, v{V_DX+j}")
    s.emit(f"s_and_b32 s{S_T0}, s{S_WAVE}, 1")
    s.emit(f"s_lshl_b32 s{S_T0}, s{S_T0}, 6")
    for j in range(3):
        s.emit(f"v_add_u32 v{t0}, {64*j}, v1")
        s.emit(f"v_mul_lo_u32 v{t1}, v{t0}, s{S_T1}")
        s.emit(f"v_lshrrev_b32 v{t1}, 17, v{t1}")
        s.emit(f"v_lshlrev_b32 v{t0}, 4, v1")
        s.emit(f"v_lshlrev_b32 v{t2}, 4, v{t1}")
        s.emit(f"v_xor_b32 v{t2}, v{t0}, v{t2}")
        s.emit(f"v_xor_b32 v{V_DK+j}, s{S_T0}, v{t2}")
        s.emit(f"v_xor_b32 v{V_DKE+j}, 64, v{V_DK+j}")
        s.emit(f"v_lshlrev_b32 v{t2}, 5, v{t1}")
        s.emit(f"v_xor_b32 v{V_DV+j}, v{t0}, v{t2}")
    s.emit(f"s_mul_i32 s{S_T0}, s{S_B}, 245760")
    srd(s, S_X, S_PTR + 0, f"s{S_T0}", 245760)
    s.emit(f"s_mul_i32 s{S_T0}, s{S_H}, 384")
    s.emit(f"s_sub_u32 s{S_T1}, {640*12288}, s{S_T0}")
    srd(s, S_WQ, S_PTR + 6, f"s{S_T0}", f"s{S_T1}")
    s.emit(f"s_lshl_b32 s{S_T1}, s{S_B}, 5")
    s.emit(f"s_add_u32 s{S_T1}, s{S_T1}, s{S_H}")
    s.emit(f"s_mul_i32 s{S_T0}, s{S_T1}, 196608")
    srd(s, S_K, S_PTR + 2, f"s{S_T0}", 196608)
    srd(s, S_V, S_PTR + 4, f"s{S_T0}", 196608)
    s.emit(f"s_mul_i32 s{S_T0}, s{S_T1}, 73728")
    s.emit(f"s_mul_i32 s{S_T1}, s{S_WAVE}, 18432")
    s.emit(f"s_add_u32 s{S_T0}, s{S_T0}, s{S_T1}")
    if OOFF: s.emit(f"s_add_u32 s{S_T0}, s{S_T0}, {OOFF}")
    srd(s, S_O, S_PTR + 14, f"s{S_T0}", 18432)
    s.emit(f"s_lshl_b32 s{S_M0X}, s{S_WAVE}, 13")
    s.emit(f"s_lshl_b32 s{S_M0W}, s{S_WAVE}, 12")
    s.emit(f"s_mul_i32 s{S_KV}, s{S_WAVE}, 3072")
    s.emit(f"s_mov_b32 s{S_PASS}, 0")

def k1_setup2(s, cfg):
    t0, t1, t2 = V_T, V_T + 1, V_T + 2
    c = math.log2(math.e) / math.sqrt(192.0)
    s.emit(f"s_mov_b32 s{S_SC}, {hex(f2u(c))}")
    s.emit(f"s_mov_b32 s{S_SC+1}, {hex(f2u(c))}")
    s.emit(f"v_lshrrev_b32 v{t0}, 1, v3")
    s.emit(f"v_xor_b32 v{t0}, v2, v{t0}")
    s.emit(f"v_lshlrev_b32 v{t0}, 4, v{t0}")
    s.emit(f"s_mul_i32 s{S_T0}, s{S_WAVE}, {48*128}")
    s.emit(f"s_add_u32 s{S_T0}, s{S_T0}, {L_P1}")
    s.emit(f"v_lshl_add_u32 v{t1}, v3, 7, s{S_T0}")
    s.emit(f"v_add_u32 v{V_X}, v{t1}, v{t0}")
    s.emit(f"v_xor_b32 v{V_X+1}, 64, v{V_X}")
    s.emit(f"v_mul_u32_u24 v{t1}, 0x180, v3")
    s.emit(f"v_add_u32 v{V_KA}, v{t1}, v{t0}")
    s.emit(f"v_xor_b32 v{V_KA+1}, 64, v{V_KA}")
    s.emit(f"v_add_u32 v{V_KA+2}, {3*U}, v{V_KA}")
    s.emit(f"v_add_u32 v{V_KA+3}, {3*U}, v{V_KA+1}")
    s.emit(f"v_and_b32 v{t0}, 1, v2")
    s.emit(f"v_lshlrev_b32 v{t0}, 1, v{t0}")
    s.emit(f"v_lshrrev_b32 v{t1}, 1, v4")
    s.emit(f"v_add_u32 v{t0}, v{t0}, v{t1}")
    s.emit(f"v_lshlrev_b32 v{t0}, 5, v{t0}")
    s.emit(f"v_lshl_add_u32 v{t0}, v5, 3, v{t0}")
    s.emit(f"v_lshl_add_u32 v{t1}, v2, 3, v4")
    s.emit(f"v_mul_u32_u24 v{t1}, 0x180, v{t1}")
    s.emit(f"v_add_u32 v{t1}, {L_W}, v{t1}")
    for bb in range(4):
        s.emit(f"v_xor_b32 v{t2}, {bb*32}, v{t0}")
        s.emit(f"v_add_u32 v{V_W+bb}, v{t1}, v{t2}")
    s.emit(f"v_lshl_add_u32 v{t1}, v2, 2, v4")
    s.emit(f"v_mul_u32_u24 v{t1}, 0x180, v{t1}")
    for bb in range(4):
        s.emit(f"v_xor_b32 v{t2}, {bb*32}, v{t0}")
        s.emit(f"v_add_u32 v{t2}, v{t1}, v{t2}")
        s.emit(f"v_add_u32 v{V_VA+bb}, {10*U}, v{t2}")
        s.emit(f"v_add_u32 v{V_VA+4+bb}, {7*U}, v{t2}")
    for qt in range(3):
        s.emit(f"v_mov_b32 v{V_MP+qt}, 0xff800000")

def dma_wq(cfg, ks):
    out = []
    for j in range(4):
        pre = []
        if j == 0: pre.append(f"s_add_u32 m0, s{S_M0W}, {L_W + (ks%3)*U}")
        out.append((pre, I(f"buffer_load_dwordx4 v{V_DWQ+j}, {sr(S_WQ,4)}, s{S_WQOFF} offen offset:{1024*j} {cfg['w_pol']} lds", tag=("wq", ks))))
    post = [f"s_add_u32 s{S_WQOFF}, s{S_WQOFF}, {32*12288}",
            [f"s_cmp_eq_u32 s{S_WQOFF}, {640*12288}", f"s_cselect_b32 s{S_WQOFF}, 0, s{S_WQOFF}"]]
    return out, post

def dma_x(cfg, jx, g):
    out = []
    for j in range(4):
        pre = []
        if j == 0:
            pre.append(f"s_add_u32 m0, s{S_M0X}, {L_P1 + (jx&1)*2*U + g*4096}")
            pre.append(f"s_add_u32 s{S_SO}, s{S_XOFF}, {g*32*1280}")
        out.append((pre, I(f"buffer_load_dwordx4 v{V_DX+j}, {sr(S_X,4)}, s{S_SO} offen offset:{1024*j} {cfg['w_pol']} lds", tag=("x", jx))))
    post = []
    if g == 1:
        post = [f"s_add_u32 s{S_XOFF}, s{S_XOFF}, 128",
                [f"s_cmp_eq_u32 s{S_XOFF}, 1280", f"s_cselect_b32 s{S_XOFF}, 0, s{S_XOFF}"]]
    return out, post

def dma_kv_own(cfg, which, t):
    base = kslot(t) if which == "K" else vslot(t)
    vb = V_DK if which == "K" else V_DV
    sd = S_K if which == "K" else S_V
    out = []
    for j in range(3):
        pre = []
        if j == 0:
            pre.append(f"s_add_u32 m0, s{S_KV}, {base}")
            pre.append(f"s_add_u32 s{S_SO2}, s{S_KV}, {t*U}")
        out.append((pre, I(f"buffer_load_dwordx4 v{vb+j}, {sr(sd,4)}, s{S_SO2} offen offset:{1024*j} {cfg['kv_pol']} lds", tag=(which, t))))
    return out

def dma_kv_all(cfg, which, t):
    base = kslot(t) if which == "K" else vslot(t)
    sd = S_K if which == "K" else S_V
    out = []
    for gi in range(4):
        vb = V_DV if which == "V" else (V_DK if gi & 1 else V_DKE)
        for j in range(3):
            pre = []
            if j == 0:
                pre.append(f"s_mov_b32 m0, {base + gi*3072}")
                pre.append(f"s_mov_b32 s{S_SO2}, {t*U + gi*3072}")
            out.append((pre, I(f"buffer_load_dwordx4 v{vb+j}, {sr(sd,4)}, s{S_SO2} offen offset:{1024*j} {cfg['kv_pol']} lds", tag=(which, t))))
    return out

def emit_dmas(s, lst):
    for pre, d in lst:
        for p in pre: s.emit(p)
        s.emit(d)

def place_dmas(g, start, lst, step=1):
    p = start
    for pre, d in lst:
        while p < g.n - 1 and g.used[p] > 0: p += 1
        for x in pre: g.put(p, x, 's', 0)
        g.put(p, d, 'd', 2)
        p += step
    return p

def rd_wq(ks, T):
    a, bb = T >> 2, T & 3
    o = (ks % 3) * U + a * 128
    return [f"ds_read_b64_tr_b16 {ar(A_AF+4*T,2)}, v{V_W+bb} offset:{o}",
            f"ds_read_b64_tr_b16 {ar(A_AF+4*T+2,2)}, v{V_W+bb} offset:{o+1536}"]

def xf(jx, k2, qt): return A_XF + ((jx & 1) * 6 + k2 * 3 + qt) * 4
def rd_x(jx):
    return [f"ds_read_b128 {ar(xf(jx,k2,qt),4)}, v{V_X+k2} offset:{(jx&1)*2*U + qt*2048}" for k2 in range(2) for qt in range(3)]

def rd_k(t, kt, ks):
    j = t % 6
    win, o = (0, j * U) if j < 3 else (1, (j - 3) * U)
    o += kt * 6144 + (ks >> 1) * 128
    return f"ds_read_b128 {ar(A_KF+(kt*6+ks)*4,4)}, v{V_KA+win*2+(ks&1)} offset:{o}"

def rd_v(t, dt):
    j = t % 6
    win, o = (0, j * U) if j < 3 else (1, (j - 3) * U)
    a, bb = dt >> 2, dt & 3
    o += a * 128
    return [f"ds_read_b64_tr_b16 {ar(A_VF+4*dt,2)}, v{V_VA+win*4+bb} offset:{o}",
            f"ds_read_b64_tr_b16 {ar(A_VF+4*dt+2,2)}, v{V_VA+win*4+bb} offset:{o+6144}"]

BAR_P1 = 24

def k1_p1(s, cfg, role):
    kvq = []
    if role == 'A':
        for lst, post in (dma_wq(cfg, 0), dma_x(cfg, 0, 0), dma_x(cfg, 0, 1), dma_wq(cfg, 1), dma_wq(cfg, 2), dma_x(cfg, 1, 0), dma_x(cfg, 1, 1)):
            emit_dmas(s, lst)
            for p in post: s.emit(p)
    else:
        for which, t in (("K", 0), ("K", 1), ("V", 0), ("K", 2), ("V", 1), ("V", 2)):
            kvq += dma_kv_all(cfg, which, t)
        code_touch(s, cfg["k1_bytes"], V_T, V_T + 3, 58, 1)
        n0 = cfg.get("kv_pre", 0)
        emit_dmas(s, kvq[:n0]); kvq = kvq[n0:]
    k1_setup2(s, cfg)
    if role == 'A': s.wait_tags({("wq", 0), ("x", 0)})
    s.emit("s_barrier")
    stamp(s, cfg, 1)
    pend = rd_x(0)[:3] + rd_wq(0, 0) + rd_wq(0, 1) + rd_wq(0, 2)
    for r in pend: s.emit(r)
    pend = rd_x(0)[3:]
    for T in range(3, 12): pend += rd_wq(0, T)
    late = {16: [("K", 3), ("K", 4)], 17: [("V", 5)], 18: [("K", 5), ("V", 3)], 19: [("V", 4)]}
    carry = []
    carry_post = []
    for ks in range(20):
        jx, k2 = ks >> 1, ks & 1
        mf = []
        for T in range(12):
            for qt in range(3):
                c = "0" if ks == 0 else vr(acc(T, qt), 4)
                mf.append(f"{MF} {vr(acc(T,qt),4)}, {ar(A_AF+4*T,4)}, {ar(xf(jx,k2,qt),4)}, {c}")
        g = Gaps(36)
        p = 0
        for r in pend:
            p = g.place(p, r, 'd', 1, maxds=2 if ks == 0 else 1)
        lastread = p
        assert lastread < BAR_P1 - 1, lastread
        p = place_dmas(g, 0, carry)
        for x in carry_post: p = g.place(p, x, 's', 0) + 1
        def bar(st, ks=ks):
            tags = set()
            if role == 'A':
                tags.add(("wq", ks + 1))
                if ks & 1: tags.add(("x", (ks + 1) >> 1))
            tags = {tg for tg in tags if tg not in (("wq", 20), ("x", 10))}
            st.wait_tags(tags, lg=0, expect=lambda tg: 4 if tg[0] == "wq" else 8)
            st.emit("s_barrier")
        g.put(BAR_P1, bar, 's', 2)
        nxt = []
        if ks < 19:
            if ks & 1: nxt += rd_x((ks + 1) >> 1)[:3]
            for T in range(12): nxt += rd_wq(ks + 1, T)
            if ks & 1: nxt = nxt[:9] + rd_x((ks + 1) >> 1)[3:] + nxt[9:]
        p = BAR_P1 + 1
        nplaced = 0
        nmax = 9 if (ks & 1) else 8
        while nxt and nplaced < nmax:
            g.put(p, nxt.pop(0), 'd', 1); p += 1; nplaced += 1
        pend = nxt
        new = []; post = []
        if role == 'A':
            if ks + 3 < 20:
                l, po = dma_wq(cfg, ks + 3); new += l; post += po
            if jx + 2 < 10:
                l, po = dma_x(cfg, jx + 2, k2); new += l; post += po
        else:
            if ks >= cfg["kv_start"]:
                n = cfg["kv_rate"] if ks < 15 else len(kvq)
                new += kvq[:n]; kvq = kvq[n:]
        for which, t in late.get(ks, []): new += dma_kv_own(cfg, which, t)
        free = [q for q in range(p, 36) if g.used[q] == 0]
        k = min(len(free), len(new))
        now, carry = new[:k], new[k:]
        place_dmas(g, p, now)
        carry_post = post
        if ks == 19:
            g.sc[35].append(lambda st, c=carry: emit_dmas(st, c))
            carry = []
        interleave(s, mf, g.fillers())
    assert not kvq

def k1_convert_q(s):
    t = V_S[1]
    for m in range(6):
        for qt in range(3):
            A, B = acc(2 * m, qt), acc(2 * m + 1, qt)
            for r in (A, A + 2, B, B + 2):
                s.emit(f"v_pk_mul_f32 {vr(r,2)}, {vr(r,2)}, {sr(S_SC,2)}")
        for qt in range(3):
            A, B = acc(2 * m, qt), acc(2 * m + 1, qt)
            b = t + (m & 1) * 12 + qt * 4
            for k, r in enumerate((A, A + 2, B, B + 2)):
                s.emit(f"v_cvt_pk_bf16_f32 v{b+k}, v{r}, v{r+1}")
        for qt in range(3):
            b = t + (m & 1) * 12 + qt * 4
            s.emit(f"v_permlane32_swap_b32 v{b}, v{b+2}")
            s.emit(f"v_permlane32_swap_b32 v{b+1}, v{b+3}")
        for qt in range(3):
            b = t + (m & 1) * 12 + qt * 4
            s.emit(f"v_permlane16_swap_b32 v{b}, v{b+2}")
            s.emit(f"v_permlane16_swap_b32 v{b+1}, v{b+3}")
        for qt in range(3):
            b = t + (m & 1) * 12 + qt * 4
            for k in range(4):
                s.emit(f"v_accvgpr_write_b32 a{A_Q+(m*3+qt)*4+k}, v{b+k}")

def sreg(t, kt, qt): return V_S[t & 1] + (kt * 3 + qt) * 4

def qk_mfmas(t, czero):
    mf = []
    for kt in range(2):
        for ks in range(6):
            for qt in range(3):
                d = vr(sreg(t, kt, qt), 4)
                c = d if ks else ("0" if czero else vr(V_NM + 4 * qt, 4))
                mf.append(f"{MF} {d}, {ar(A_KF+(kt*6+ks)*4,4)}, {ar(A_Q+(ks*3+qt)*4,4)}, {c}")
    return mf

def rowmax_tile(s, t, dst):
    for qt in range(3):
        a, b = sreg(t, 0, qt), sreg(t, 1, qt)
        s.emit(f"v_max3_f32 v{dst+qt}, v{a}, v{a+1}, v{dst+qt}")
        s.emit(f"v_max3_f32 v{dst+qt}, v{a+2}, v{a+3}, v{dst+qt}")
        s.emit(f"v_max3_f32 v{dst+qt}, v{b}, v{b+1}, v{dst+qt}")
        s.emit(f"v_max3_f32 v{dst+qt}, v{b+2}, v{b+3}, v{dst+qt}")

def cross_g(s, r, n, op, tmp):
    for perm in ("v_permlane32_swap_b32", "v_permlane16_swap_b32"):
        for k in range(n): s.emit(f"v_mov_b32 v{tmp+k}, v{r+k}")
        for k in range(n): s.emit(f"{perm} v{tmp+k}, v{r+k}")
        for k in range(n): s.emit(f"{op} v{r+k}, v{r+k}, v{tmp+k}")

BAR_P2 = 29

def k1_p2(s, cfg):
    s.emit("K1_P2:")
    s.wait_tags({("K", 0), ("K", 1)}, lg=0)
    s.emit("s_barrier")
    stamp(s, cfg, 3)
    for kt in range(2):
        for ks in range(6): s.emit(rd_k(0, kt, ks))
    mf = qk_mfmas(0, True)
    g = Gaps(36)
    for n in range(12):
        g.put(3 * n + 2, rd_k(1, n // 6, n % 6), 'd', 1)
    interleave(s, mf, g.fillers())
    M = V_T
    for qt in range(3): s.emit(f"v_mov_b32 v{M+qt}, v{V_MP+qt}")
    rowmax_tile(s, 0, M)
    cross_g(s, M, 3, "v_max_f32", V_T + 3)
    for qt in range(3):
        for k in range(4): s.emit(f"v_sub_f32 v{V_NM+4*qt+k}, 0, v{M+qt}")
        s.emit(f"v_mov_b32 v{V_L+qt}, 0")
    s.wait(lg=0)
    s.emit("s_barrier")
    emit_dmas(s, dma_kv_own(cfg, "K", 6))
    for kt in range(2):
        for qt in range(3):
            for k in range(4):
                r = sreg(0, kt, qt) + k
                s.emit(f"v_sub_f32 v{r}, v{r}, v{M+qt}")
    for t in range(16):
        ex = []
        for qt in range(3):
            for kt in range(2):
                r = sreg(t, kt, qt)
                ex.append(([f"v_exp_f32 v{r+k}, v{r+k}" for k in range(4)],
                           [f"v_cvt_pk_bf16_f32 v{V_P+4*qt+2*kt}, v{r}, v{r+1}", f"v_cvt_pk_bf16_f32 v{V_P+4*qt+2*kt+1}, v{r+2}, v{r+3}"]))
        adds = []
        for kt in range(2):
            for k in range(4):
                for qt in range(3):
                    adds.append(f"v_add_f32 v{V_L+qt}, v{V_L+qt}, v{sreg(t,kt,qt)+k}")
        vreads = []
        for dt in range(12): vreads += rd_v(t, dt)
        def bar(st, t=t):
            tags = {("V", t)}
            if t + 2 < 16: tags.add(("K", t + 2))
            st.wait_tags(tags, lg=0, expect=lambda tg: 12 if tg[1] < 3 else 3)
            st.emit("s_barrier")
        if t < 15:
            mf = qk_mfmas(t + 1, False)
            g = Gaps(36)
            p = 0
            for es, cs in ex:
                for e in es: g.put(p, e, 'v', 2); p += 1
                for c in cs: g.put(p, c, 'v', 1)
                p += 1
            g.put(BAR_P2, bar, 's', 0)
            p = BAR_P2 + 1
            while p < 36:
                g.put(p, vreads.pop(0), 'd', 1)
                g.put(p, adds.pop(0), 'v', 1)
                p += 1
            interleave(s, mf, g.fillers())
        else:
            bar(s)
            for _ in range(6): s.emit(vreads.pop(0))
            for es, cs in ex:
                for e in es: s.emit(e)
            for es, cs in ex:
                for c in cs: s.emit(c)
        mf = []
        for dt in range(12):
            for qt in range(3):
                d = vr(acc(dt, qt), 4)
                mf.append(f"{MF} {d}, {ar(A_VF+4*dt,4)}, {vr(V_P+4*qt,4)}, {d if t else '0'}")
        g = Gaps(36)
        dm = []
        if t + 7 < 16: dm += dma_kv_own(cfg, "K", t + 7)
        if t >= 1 and t + 5 < 16: dm += dma_kv_own(cfg, "V", t + 5)
        kreads = [rd_k(t + 2, n // 6, n % 6) for n in range(12)] if t + 2 < 16 else []
        p = 0
        for r in vreads:
            g.put(p, r, 'd', 1); p += 1
        p = place_dmas(g, p, dm)
        for r in kreads: p = g.place(p, r, 'd', 1) + 1
        q = 0
        for a in adds: q = g.place(q, a, 'v', 1)
        interleave(s, mf, g.fillers())
    stamp(s, cfg, 4)

def k1_tail(s, cfg):
    cross_g(s, V_L, 3, "v_add_f32", V_T)
    s.emit(f"v_max3_f32 v{V_T}, v{V_L}, v{V_L+1}, v{V_L+2}")
    s.emit(f"v_add_f32 v{V_T+1}, v{V_L}, v{V_L+1}")
    s.emit(f"v_add_f32 v{V_T+1}, v{V_T+1}, v{V_L+2}")
    s.emit(f"s_mov_b32 s{S_T0}, {hex(f2u(2.0**40))}")
    s.emit(f"v_cmp_nlt_f32 vcc, v{V_T+1}, s{S_T0}")
    s.emit(f"s_cmp_lg_u64 vcc, 0")
    s.emit(f"s_cselect_b32 s{S_T0}, 1, 0")
    s.emit(f"v_mov_b32 v{V_T}, s{S_T0}")
    s.emit(f"s_lshl_b32 s{S_T1}, s{S_WAVE}, 2")
    s.emit(f"s_add_u32 s{S_T1}, s{S_T1}, {L_MISC}")
    s.emit(f"v_mov_b32 v{V_T+1}, s{S_T1}")
    s.emit(f"ds_write_b32 v{V_T+1}, v{V_T}")
    for qt in range(3): s.emit(f"v_rcp_f32 v{V_L+qt}, v{V_L+qt}")
    s.emit(f"v_mov_b32 v{V_T+1}, {L_MISC}")
    s.wait(lg=0)
    s.emit("s_barrier")
    s.emit(f"ds_read_b128 {vr(V_T+3,4)}, v{V_T+1}")
    s.emit(f"v_or3_b32 v{V_T}, v{V_T+3}, v{V_T+4}, v{V_T+5}")
    s.emit(f"v_or_b32 v{V_T}, v{V_T}, v{V_T+6}")
    s.emit(f"v_readfirstlane_b32 s{S_T0}, v{V_T}")
    s.emit(f"s_cmp_gt_u32 s{S_T0}, s{S_PASS}")
    s.emit("s_cbranch_scc1 K1_FALLBACK")
    for qt in range(3):
        s.emit(f"v_mov_b32 v{V_NM+2*qt}, v{V_L+qt}")
        s.emit(f"v_mov_b32 v{V_NM+2*qt+1}, v{V_L+qt}")
    s.emit(f"v_lshlrev_b32 v{V_T}, 4, v1")
    for m in range(6):
        for qt in range(3):
            A, B = acc(2 * m, qt), acc(2 * m + 1, qt)
            for r in (A, A + 2, B, B + 2):
                s.emit(f"v_pk_mul_f32 {vr(r,2)}, {vr(r,2)}, {vr(V_NM+2*qt,2)}")
        for qt in range(3):
            A, B = acc(2 * m, qt), acc(2 * m + 1, qt)
            b = V_S[0] + (m % 4) * 12 + qt * 4
            for k, r in enumerate((A, A + 2, B, B + 2)):
                s.emit(f"v_cvt_pk_bf16_f32 v{b+k}, v{r}, v{r+1}")
        s.emit(f"s_mov_b32 s{S_SO}, {m*3072}")
        for qt in range(3):
            b = V_S[0] + (m % 4) * 12 + qt * 4
            s.emit(f"buffer_store_dwordx4 {vr(b,4)}, v{V_T}, {sr(S_O,4)}, s{S_SO} offen offset:{qt*1024} {cfg['o_st']}")

def k1_fallback(s, cfg):
    s.emit("K1_FALLBACK:")
    s.emit(f"s_mov_b32 s{S_PASS}, 1")
    s.emit(f"s_mov_b32 s{S_T0}, 0")
    s.emit("K1_FB_LOOP:")
    s.wait(vm=0, lg=0)
    s.emit("s_barrier")
    s.emit(f"s_add_u32 m0, s{S_KV}, 0")
    s.emit(f"s_add_u32 s{S_SO2}, s{S_KV}, s{S_T0}")
    for j in range(3):
        s.emit(f"buffer_load_dwordx4 v{V_DK+j}, {sr(S_K,4)}, s{S_SO2} offen offset:{1024*j} lds")
    s.wait(vm=0)
    s.emit("s_barrier")
    for kt in range(2):
        for ks in range(6): s.emit(rd_k(0, kt, ks))
    for m in qk_mfmas(0, True): s.emit(m)
    rowmax_tile(s, 0, V_MP)
    s.emit(f"s_add_u32 s{S_T0}, s{S_T0}, {U}")
    s.emit(f"s_cmp_lt_u32 s{S_T0}, {16*U}")
    s.emit("s_cbranch_scc1 K1_FB_LOOP")
    s.wait(vm=0, lg=0)
    s.emit("s_barrier")
    for t in range(6):
        emit_dmas(s, dma_kv_own(cfg, "K", t))
        emit_dmas(s, dma_kv_own(cfg, "V", t))
    s.wait(vm=0)
    s.emit("s_nop 15")
    s.emit("s_branch K1_P2")

def gen_k1(cfg, name):
    s = Stream()
    k1_setup(s, cfg)
    s.emit(f"s_cmp_eq_u32 s{S_WAVE}, 3")
    s.emit("s_cbranch_scc1 K1_P1B")
    a = Stream(); a.clone_state_from(s)
    k1_p1(a, cfg, 'A')
    a.emit("s_branch K1_JOIN")
    b = Stream(); b.clone_state_from(s)
    b.emit("K1_P1B:")
    k1_p1(b, cfg, 'B')
    b.emit("K1_JOIN:")
    stamp(b, cfg, 2)
    b.wait(lg=0) if b.smem else None
    k1_convert_q(b)
    k1_p2(b, cfg)
    k1_tail(b, cfg)
    stamp_flush(b, cfg, 5, 0, S_PTR + 14, S_WAVE)
    b.emit("K1_END:")
    b.emit("s_endpgm")
    f = Stream()
    k1_fallback(f, cfg)
    txt = head(name) + s.text() + a.text() + b.text() + f.text()
    return txt, (s, a, b, f)

def gen_k2(cfg, name):
    s = Stream()
    S_WO, S_OB, S_PB = 4, 8, 12
    S_W, S_HG, S_CQ, S_BB, T0, T1 = 24, 25, 26, 27, 28, 29
    S_HW, S_HO = 30, 34
    S_M0, S_S1 = 38, 39
    V_A2 = 136
    V_DW, V_WA, V_LO = 8, 13, 17
    A_B, A_A = 0, 144
    DT = 20480
    acc2 = lambda T, qt: V_A2 + (T * 3 + qt) * 4
    s.emit(f"s_load_dwordx16 {sr(S_PTR,16)}, s[0:1], 0")
    s.emit("s_cmp_ge_u32 s2, 256")
    s.emit("s_cbranch_scc1 K2_END")
    stamp(s, cfg, 0)
    s.emit("v_and_b32 v1, 63, v0")
    s.emit("v_lshrrev_b32 v2, 6, v0")
    s.emit(f"v_readfirstlane_b32 s{S_W}, v2")
    s.emit(f"s_and_b32 s{S_HG}, s2, 7")
    s.emit(f"s_lshr_b32 s{S_CQ}, s2, 3")
    s.emit(f"s_and_b32 s{S_CQ}, s{S_CQ}, 3")
    s.emit(f"s_lshr_b32 s{S_BB}, s2, 5")
    for n in range(4):
        s.emit(f"s_add_u32 s{T0}, s{S_CQ}, {n}")
        s.emit(f"s_and_b32 s{T0}, s{T0}, 3")
        s.emit(f"s_mul_i32 s{S_HW+n}, s{T0}, {192*1280}")
        s.emit(f"s_mul_i32 s{S_HO+n}, s{T0}, 73728")
    s.emit(f"v_lshlrev_b32 v{V_LO}, 4, v1")
    s.emit(f"s_mov_b32 s{T1}, 3277")
    s.emit(f"s_lshl_b32 s{T0}, s{S_W}, 4")
    for j in range(5):
        s.emit(f"v_add_u32 v3, {64*j}, v1")
        s.emit(f"v_mul_lo_u32 v4, v3, s{T1}")
        s.emit(f"v_lshrrev_b32 v4, 16, v4")
        s.emit(f"v_mul_u32_u24 v5, 20, v4")
        s.emit(f"v_sub_u32 v3, v3, v5")
        s.emit(f"v_bfe_u32 v5, v4, 2, 1")
        s.emit(f"v_lshlrev_b32 v5, 1, v5")
        s.emit(f"v_xor_b32 v3, v3, v5")
        s.emit(f"v_lshlrev_b32 v3, 4, v3")
        s.emit(f"v_add_u32 v4, s{T0}, v4")
        s.emit(f"v_mul_u32_u24 v4, 0x500, v4")
        s.emit(f"v_add_u32 v{V_DW+j}, v3, v4")
        lo = (j % 3) * 1024
        if lo: s.emit(f"v_subrev_u32 v{V_DW+j}, {lo}, v{V_DW+j}")
    s.emit(f"s_mul_i32 s{T0}, s{S_HG}, {768*1280}")
    s.emit(f"s_mul_i32 s{T1}, s{S_CQ}, 320")
    s.emit(f"s_add_u32 s{T0}, s{T0}, s{T1}")
    s.emit(f"s_sub_u32 s{T1}, {6144*1280}, s{T0}")
    srd(s, S_WO, S_PTR + 8, f"s{T0}", f"s{T1}")
    s.emit(f"s_lshl_b32 s{T0}, s{S_BB}, 3")
    s.emit(f"s_add_u32 s{T0}, s{T0}, s{S_HG}")
    s.emit(f"s_mul_i32 s{T0}, s{T0}, {4*73728}")
    s.emit(f"s_mul_i32 s{T1}, s{S_W}, 18432")
    s.emit(f"s_add_u32 s{T0}, s{T0}, s{T1}")
    if OOFF: s.emit(f"s_add_u32 s{T0}, s{T0}, {OOFF}")
    srd(s, S_OB, S_PTR + 14, f"s{T0}", 3 * 73728 + 18432)
    s.emit(f"s_lshl_b32 s{T0}, s{S_BB}, 2")
    s.emit(f"s_add_u32 s{T0}, s{T0}, s{S_CQ}")
    s.emit(f"s_lshl_b32 s{T0}, s{T0}, 3")
    s.emit(f"s_add_u32 s{T0}, s{T0}, s{S_HG}")
    s.emit(f"s_lshl_b32 s{T0}, s{T0}, 2")
    s.emit(f"s_add_u32 s{T0}, s{T0}, s{S_W}")
    s.emit(f"s_mul_i32 s{T0}, s{T0}, 15360")
    s.emit(f"s_add_u32 s{T0}, s{T0}, {POFF}")
    srd(s, S_PB, S_PTR + 14, f"s{T0}", 15360)
    s.emit(f"s_mul_i32 s{S_M0}, s{S_W}, 5120")

    def dma_wo(D):
        out = []
        for j in range(5):
            pre = []
            if j == 0:
                pre.append(f"s_add_u32 m0, s{S_M0}, {(D%6)*DT}")
                pre.append(f"s_add_u32 s{S_S1}, s{S_HW + D//3}, {(D%3)*64*1280}")
            if j == 3: pre.append(f"s_add_u32 m0, s{S_M0}, {(D%6)*DT + 3072}")
            out.append((pre, I(f"buffer_load_dwordx4 v{V_DW+j}, {sr(S_WO,4)}, s{S_S1} offen offset:{(j%3)*1024} {cfg['w_pol']} lds", tag=("wo", D))))
        return out
    def bf(n, m, qt): return A_B + (n & 1) * 72 + (m * 3 + qt) * 4
    def ld_o(n, m):
        out = []
        for qt in range(3):
            pre = [f"s_add_u32 s{T0}, s{S_HO+n}, {m*3072}"] if qt == 0 else []
            out.append((pre, I(f"buffer_load_dwordx4 {ar(bf(n,m,qt),4)}, v{V_LO}, {sr(S_OB,4)}, s{T0} offen offset:{qt*1024} {cfg['o_ld']}")))
        return out
    def rd_wo(ks, T):
        D, e = ks >> 1, ks & 1
        j = D % 6
        win, o = j // 3, (j % 3) * DT + e * 10240 + (T >> 1) * 64
        v = V_WA + win * 2 + (T & 1)
        return [f"ds_read_b64_tr_b16 {ar(A_A+4*T,2)}, v{v} offset:{o}", f"ds_read_b64_tr_b16 {ar(A_A+4*T+2,2)}, v{v} offset:{o+5120}"]

    emit_dmas(s, dma_wo(0)); emit_dmas(s, ld_o(0, 0)); emit_dmas(s, ld_o(0, 1))
    emit_dmas(s, dma_wo(1)); emit_dmas(s, ld_o(0, 2)); emit_dmas(s, ld_o(0, 3))
    emit_dmas(s, dma_wo(2)); emit_dmas(s, ld_o(0, 4)); emit_dmas(s, ld_o(0, 5))
    code_touch(s, cfg["k2_bytes"], 3, 6, 58, 1)
    emit_dmas(s, dma_wo(3)); emit_dmas(s, ld_o(1, 0)); emit_dmas(s, ld_o(1, 1))
    emit_dmas(s, dma_wo(4)); emit_dmas(s, ld_o(1, 2)); emit_dmas(s, ld_o(1, 3))
    s.emit("v_lshrrev_b32 v2, 4, v1")
    s.emit("v_bfe_u32 v3, v1, 2, 2")
    s.emit("v_and_b32 v4, 3, v1")
    s.emit("v_lshl_add_u32 v3, v2, 2, v3")
    s.emit("v_mul_u32_u24 v3, 0x140, v3")
    s.emit("v_lshl_add_u32 v3, v4, 3, v3")
    s.emit("v_and_b32 v2, 1, v2")
    s.emit(f"v_lshl_add_u32 v{V_WA}, v2, 5, v3")
    s.emit("v_xor_b32 v2, 1, v2")
    s.emit(f"v_lshl_add_u32 v{V_WA+1}, v2, 5, v3")
    s.emit(f"v_add_u32 v{V_WA+2}, {3*DT}, v{V_WA}")
    s.emit(f"v_add_u32 v{V_WA+3}, {3*DT}, v{V_WA+1}")
    s.wait_tags({("wo", 0)})
    s.emit("s_barrier")
    stamp(s, cfg, 1)
    pend = []
    for T in range(10): pend += rd_wo(0, T)
    for _ in range(6): s.emit(pend.pop(0))
    carry = dma_wo(5) + ld_o(1, 4) + ld_o(1, 5)
    BAR = 19
    for ks in range(24):
        n, m = ks // 6, ks % 6
        D, e = ks >> 1, ks & 1
        mf = []
        for T in range(10):
            for qt in range(3):
                d = vr(acc2(T, qt), 4)
                mf.append(f"{MF} {d}, {ar(A_A+4*T,4)}, {ar(bf(n,m,qt),4)}, {d if ks else '0'}")
        g = Gaps(30)
        p = 0
        for r in pend: p = g.place(p, r, 'd', 1, maxds=2 if ks == 0 else 1)
        assert p < BAR - 1
        if ks >= 1 and ks - 1 + 12 < 24:
            carry = carry + ld_o((ks - 1) // 6 + 2, (ks - 1) % 6)
        free = [q for q in range(0, BAR) if g.used[q] == 0]
        k = min(len(free), len(carry))
        place_dmas(g, 0, carry[:k]); carry = carry[k:]
        new = []
        if e == 1 and ks < 23:
            def bar(st, D=D):
                st.wait_tags({("wo", D + 1)}, lg=0, expect=lambda tg: 5)
                st.emit("s_barrier")
            g.put(BAR, bar, 's', 2)
            if D + 6 < 12: new = dma_wo(D + 6)
        nxt = []
        if ks < 23:
            for T in range(10): nxt += rd_wo(ks + 1, T)
        p = BAR + 1
        for _ in range(8):
            if nxt: g.put(p, nxt.pop(0), 'd', 1); p += 1
        pend = nxt
        carry = carry + new
        free = [q for q in range(p, 30) if g.used[q] == 0]
        k = min(len(free), len(carry))
        place_dmas(g, p, carry[:k]); carry = carry[k:]
        interleave(s, mf, g.fillers())
    assert not carry
    stamp(s, cfg, 2)
    for tp in range(5):
        for qt in range(3):
            A, B = acc2(2 * tp, qt), acc2(2 * tp + 1, qt)
            b = 20 + (tp * 3 + qt) * 4
            for k, r in enumerate((A, A + 2, B, B + 2)):
                s.emit(f"v_cvt_pk_bf16_f32 v{b+k}, v{r}, v{r+1}")
        s.emit(f"s_mov_b32 s{T0}, {tp*3072}")
        for qt in range(3):
            b = 20 + (tp * 3 + qt) * 4
            s.emit(f"buffer_store_dwordx4 {vr(b,4)}, v{V_LO}, {sr(S_PB,4)}, s{T0} offen offset:{qt*1024} {cfg['p_st']}")
    stamp_flush(s, cfg, 3, 1, S_PTR + 14, S_W)
    s.emit("K2_END:")
    s.emit("s_endpgm")
    return head(name) + s.text(), (s,)

def gen_k3(cfg, name):
    s = Stream()
    s.emit(f"s_load_dwordx2 s[4:5], s[0:1], 40")
    s.emit(f"s_load_dwordx2 s[6:7], s[0:1], 56")
    s.emit("s_cmp_ge_u32 s2, 480")
    s.emit("s_cbranch_scc1 K3_END")
    stamp(s, cfg, 0)
    s.emit("v_and_b32 v1, 63, v0")
    s.emit("v_lshrrev_b32 v2, 6, v0")
    s.emit("v_readfirstlane_b32 s24, v2")
    s.emit("s_lshl_b32 s16, s2, 2")
    s.emit("s_add_u32 s16, s16, s24")
    s.emit("s_mul_i32 s17, s16, 17477")
    s.emit("s_lshr_b32 s17, s17, 20")
    s.emit("s_mul_i32 s18, s17, 60")
    s.emit("s_sub_u32 s18, s16, s18")
    s.emit("s_mul_i32 s19, s18, 4370")
    s.emit("s_lshr_b32 s19, s19, 16")
    s.emit("s_mul_i32 s20, s19, 15")
    s.emit("s_sub_u32 s20, s18, s20")
    s.emit("s_mul_i32 s21, s20, 21846")
    s.emit("s_lshr_b32 s21, s21, 16")
    s.emit("s_mul_i32 s22, s21, 3")
    s.emit("s_sub_u32 s22, s20, s22")
    s.emit("s_lshl_b32 s23, s17, 5")
    s.emit("s_add_u32 s23, s23, s19")
    s.emit("s_mul_i32 s23, s23, 15360")
    s.emit("s_lshl_b32 s25, s20, 10")
    s.emit("s_add_u32 s23, s23, s25")
    s.emit(f"s_add_u32 s23, s23, {POFF}")
    s.emit("v_lshlrev_b32 v3, 4, v1")
    srd(s, 8, 6, "s23", 8 * 4 * 15360)
    for hg in range(8):
        s.emit(f"s_mov_b32 s25, {hg*61440}")
        s.emit(f"buffer_load_dwordx4 {vr(8+4*hg,4)}, v3, s[8:11], s25 offen {cfg['p_ld']}")
    srd(s, 12, 4, None, 1966080)
    s.emit("s_lshr_b32 s25, s17, 2")
    s.emit("s_mul_i32 s25, s25, 192")
    s.emit("s_mul_i32 s26, s19, 48")
    s.emit("s_add_u32 s25, s25, s26")
    s.emit("s_lshl_b32 s26, s22, 4")
    s.emit("s_add_u32 s25, s25, s26")
    s.emit("s_mul_i32 s25, s25, 1280")
    s.emit("s_and_b32 s26, s17, 3")
    s.emit("s_mul_i32 s26, s26, 320")
    s.emit("s_add_u32 s25, s25, s26")
    s.emit("s_lshl_b32 s26, s21, 6")
    s.emit("s_add_u32 s25, s25, s26")
    s.emit("v_and_b32 v4, 15, v1")
    s.emit("v_mul_u32_u24 v4, 0x500, v4")
    s.emit("v_lshrrev_b32 v5, 4, v1")
    s.emit("v_lshl_add_u32 v4, v5, 3, v4")
    for hg in range(8):
        for k in range(4):
            r = 8 + 4 * hg + k
            if hg == 0:
                s.emit(f"v_lshlrev_b32 v{40+2*k}, 16, v{r}")
                s.emit(f"v_and_b32 v{41+2*k}, 0xffff0000, v{r}")
            else:
                s.emit(f"v_lshlrev_b32 v6, 16, v{r}")
                s.emit(f"v_and_b32 v7, 0xffff0000, v{r}")
                s.emit(f"v_add_f32 v{40+2*k}, v{40+2*k}, v6")
                s.emit(f"v_add_f32 v{41+2*k}, v{41+2*k}, v7")
    for k in range(4):
        s.emit(f"v_cvt_pk_bf16_f32 v{48+k}, v{40+2*k}, v{41+2*k}")
    s.emit("buffer_store_dwordx2 v[48:49], v4, s[12:15], s25 offen")
    s.emit("buffer_store_dwordx2 v[50:51], v4, s[12:15], s25 offen offset:32")
    stamp_flush(s, cfg, 1, 2, 6, 24)
    s.emit("K3_END:")
    s.emit("s_endpgm")
    return head(name) + s.text(), (s,)

HEADER = """; GQA block with cached K/V: Q projection + attention + output projection (gfx950).
; Kernarg: x(0) k_cache(8) v_cache(16) wq(24) wo(32) out(40) debug(48) ws(56)
"""

def est_bytes(streams):
    n = 0
    for st in streams:
        for i in st.out:
            if i.kind == 'label': continue
            n += 8 if (i.kind in ('mfma', 'dsr', 'dsw', 'dma', 'vld', 'vst', 'smem') or '0x' in i.text or i.op.startswith('v_pk') or i.op.startswith('v_cvt_pk') or i.op.startswith('v_acc') or i.op.endswith('3_f32')) else 4
    return n

def generate(cfg):
    cfg = dict(CFG, **cfg)
    cfg["k1_bytes"] = 4096; cfg["k2_bytes"] = 4096
    _, st1 = gen_k1(cfg, "gqa_attn_kernel")
    _, st2 = gen_k2(cfg, "gqa_proj_kernel")
    cfg["k1_bytes"] = est_bytes(st1[2:3]); cfg["k2_bytes"] = est_bytes(st2) - 1024
    k1, st1 = gen_k1(cfg, "gqa_attn_kernel")
    k2, st2 = gen_k2(cfg, "gqa_proj_kernel")
    k3, st3 = gen_k3(cfg, "gqa_sum_kernel")
    txt = HEADER
    txt += "; @launch kernel=gqa_attn_kernel grid=(256,1,1) block=(256,1,1) lds=163840\n"
    txt += "; @launch kernel=gqa_proj_kernel grid=(256,1,1) block=(256,1,1) lds=122880\n"
    txt += "; @launch kernel=gqa_sum_kernel grid=(480,1,1) block=(256,1,1) lds=0\n"
    txt += '.amdgcn_target "amdgcn-amd-amdhsa--gfx950"\n.text\n'
    txt += k1 + k2 + k3
    txt += '.section .rodata,"a"\n' + desc("gqa_attn_kernel") + desc("gqa_proj_kernel") + desc("gqa_sum_kernel", 56, 56)
    info = dict(k1_bytes=est_bytes(st1), k2_bytes=est_bytes(st2), nops=[x.nops for x in st1 + st2 + st3])
    return txt, info

if __name__ == "__main__":
    out = sys.argv[1]
    cfg = {}
    for a in sys.argv[2:]:
        k, v = a.split("=", 1)
        cfg[k] = int(v) if v.lstrip('-').isdigit() else v.replace("+", " ")
    txt, info = generate(cfg)
    open(out, "w").write(txt)
    print(info, len(txt))
```
